```python
import torch

def _softmax(x, axis=-1):
    return torch.softmax(x, dim=axis)
def _gelu(x):
    return torch.nn.functional.gelu(x, approximate="tanh")
def _silu(x):
    return torch.nn.functional.silu(x)
def _sigmoid(x):
    return torch.sigmoid(x)
def _layernorm(x, axis=-1, eps=1e-5):
    m = x.mean(dim=axis, keepdim=True)
    v = x.var(dim=axis, keepdim=True, unbiased=False)
    return (x - m) / torch.sqrt(v + eps)
def _scatter_add(tgt, idx, src, axis=0):
    return tgt.clone().index_add_(axis, idx, src)
def _segment_sum(src, seg, n):
    out = torch.zeros((n,) + src.shape[1:], dtype=src.dtype)
    return out.index_add_(0, seg, src)
def _pad(x, pw):
    flat = tuple(v for pair in reversed(pw) for v in pair)
    return torch.nn.functional.pad(x, flat)

kernel_name = 'standalone__paged_block_table_kv_radixattention__decode'

def setup_inputs():

    _w = (lambda a: (lambda t: t.to(torch.bfloat16) if t.is_floating_point() else t)(torch.as_tensor(a)))
    B, H, Hkv, Dh = 4, 32, 8, 128
    Lk = 16384
    bs = 16
    nb = max(2, Lk // bs)
    P = max(1, nb // 2)
    n_phys = P + B * (nb - P)
    shared = torch.arange(P, dtype=torch.int64)
    priv = P + torch.arange(B * (nb - P), dtype=torch.int64).reshape(B, nb - P)
    bt = torch.cat([torch.tile(shared[None, :], (B, 1)), priv], dim=1)
    ctx = nb * bs - (torch.arange(1, B + 1, dtype=torch.int64) * 2654435761) % max(1, (nb * bs - P * bs) // 2)
    return {
        "q": _w((lambda *s: torch.randn(*s, dtype=torch.bfloat16) * 0.8)(B, H, Dh)),
        "k_cache": _w((lambda *s: torch.randn(*s, dtype=torch.bfloat16) * 0.8)(n_phys, bs, Hkv, Dh)),
        "v_cache": _w((lambda *s: torch.randn(*s, dtype=torch.bfloat16) * 0.05)(n_phys, bs, Hkv, Dh)),
        "block_table": _w(bt.to(torch.int64)),
        "ctx_lens": _w(torch.as_tensor(ctx).to(torch.int64)),
    }

def reference(q, k_cache, v_cache, block_table, ctx_lens):
    B, H, Dh = q.shape
    n_phys, bs, Hkv, _ = k_cache.shape
    nb = block_table.shape[1]
    Lk = nb * bs
    rep = H // Hkv
    k = k_cache[block_table].reshape(B, Lk, Hkv, Dh)
    v = v_cache[block_table].reshape(B, Lk, Hkv, Dh)
    k = (lambda x, n, axis: torch.repeat_interleave(x, n, dim=axis))(k, rep, axis=2)
    v = (lambda x, n, axis: torch.repeat_interleave(x, n, dim=axis))(v, rep, axis=2)
    scores = torch.einsum("bhd,bkhd->bhk", q, k) * (Dh ** -0.5)
    pos = torch.arange(Lk)
    valid = pos[None, :] < ctx_lens[:, None]
    scores = torch.where(valid[:, None, :], scores, -1e9)
    p = _softmax(scores, axis=-1)
    return torch.einsum("bhk,bkhd->bhd", p, v)
```

```python
import sys, math, struct

NAME = "standalone__paged_block_table_kv_radixattention__decode"
KVBYTES = 2560*32768
def f32bits(x): return struct.unpack("<I", struct.pack("<f", x))[0]
CSCALE = f32bits(math.log2(math.e)/math.sqrt(128.0))
NEGBIG = f32bits(-1.0e30)

LDS_STATS = 0
LDS_CNT   = LDS_STATS + 1024
LDS_LIST  = LDS_CNT + 256
LDS_RING  = 2048
LDS_TOTAL = LDS_RING + 65536
WS_ML = 4 << 20

class Asm:
    def __init__(self): self.l = []
    def __call__(self, s):
        for line in s.strip("\n").split("\n"):
            if not line.strip(): continue
            self.l.append(line if line.endswith(":") or line.startswith(".") or line.startswith(";") else "  " + line.strip())
    def text(self): return "\n".join(self.l) + "\n"

def stamp(A, opt, idx, sreg):
    if opt.get("stamps"):
        A(f"s_memrealtime s[{sreg}:{sreg+1}]")

def main_kernel(opt):
    A = Asm()
    kn = opt["main_name"]
    vTid, vLane, vT0, vT1 = 0, 1, 2, 3
    vKoff = [4, 5, 6, 7]; vVoff = [8, 9]; vKrd = [10, 11, 12, 13]
    vShift, v4g, vNegInf, vM, vL, vD0, vD1, vT2, vT3, vAl = 14, 15, 16, 17, 18, 19, 20, 21, 22, 23
    vS = 24; vP = 28; vT4, vT5 = 30, 31
    vQ = 32; vKf = 48; vV = [64, 80]; vO = 96
    sWave, sHead, sSub, sSlice, sHp = 3, 4, 5, 6, 7
    sCtx = 32; sC, sSelLo, sSelHi, sLdsB = 36, 37, 38, 39
    sLead = 40
    sVal = 56
    sEq = 72
    sCnt = 84
    sN, sI, sK, sSoff, sPack, sKV, sLo, sNum, sZq, sTmp, sTmp2 = 92, 93, 94, 95, 96, 97, 98, 99, 100, 101, 72
    pol = opt.get("pol", "nt")

    A(f".globl {kn}\n.p2align 8\n.type {kn},@function\n{kn}:")
    A(f"s_cmp_ge_u32 s2, 256\ns_cbranch_scc1 L_end")
    A("s_load_dwordx16 s[16:31], s[0:1], 0")
    if opt.get("stamps"): A("s_memrealtime s[86:87]")
    A(f"""
v_lshrrev_b32 v{vT0}, 6, v0
v_and_b32 v{vLane}, 63, v0
v_readfirstlane_b32 s{sWave}, v{vT0}
s_and_b32 s{sHp}, s2, 3
s_lshr_b32 s{sSlice}, s2, 2
s_mov_b32 s{sC}, 0x{CSCALE:08x}
s_mov_b32 s{sSelLo}, 0x05040100
s_mov_b32 s{sSelHi}, 0x07060302
s_mov_b32 s{sKV}, 0x{KVBYTES:x}
s_and_b32 s{sTmp}, s{sWave}, 1
s_lshl_b32 s{sHead}, s{sHp}, 1
s_add_u32 s{sHead}, s{sHead}, s{sTmp}
s_lshr_b32 s{sSub}, s{sWave}, 1
s_lshl_b32 s{sLdsB}, s{sWave}, 13
s_add_u32 s{sLdsB}, s{sLdsB}, {LDS_RING}
v_lshlrev_b32 v{vT2}, 3, v0
v_add_u32 v{vT3}, 0x3000, v{vT2}
v_add_u32 v{vT2}, 0x1000, v{vT2}
v_lshrrev_b32 v{vT0}, 4, v{vLane}
v_and_b32 v{vT1}, 15, v{vLane}
v_lshrrev_b32 v{vT4}, 2, v{vT1}
v_lshlrev_b32 v{vShift}, 3, v{vT4}
v_lshlrev_b32 v{vT4}, 13, v{vT4}
v_and_b32 v{vT5}, 3, v{vT1}
v_lshl_add_u32 v{vT4}, v{vT5}, 8, v{vT4}
v_lshl_add_u32 v{vT4}, v{vT0}, 4, v{vT4}
s_lshl_b32 s{sTmp}, s{sHead}, 10
v_add_u32 v{vT4}, s{sTmp}, v{vT4}
s_waitcnt lgkmcnt(0)
""")
    E = [48, 50, 52, 54]
    A(f"""
s_load_dwordx4 s[{sCtx}:{sCtx+3}], s[24:25], 0
global_load_dwordx2 v[{E[0]}:{E[0]+1}], v{vT2}, s[22:23] offset:-4096
global_load_dwordx2 v[{E[1]}:{E[1]+1}], v{vT2}, s[22:23]
global_load_dwordx2 v[{E[2]}:{E[2]+1}], v{vT3}, s[22:23] offset:-4096
global_load_dwordx2 v[{E[3]}:{E[3]+1}], v{vT3}, s[22:23]
""")
    for s in range(4):
        A(f"global_load_dwordx4 v[{vQ+4*s}:{vQ+4*s+3}], v{vT4}, s[16:17] offset:{64*s}")
    A(f"""
s_mov_b32 s8, s18
s_and_b32 s9, s19, 0xffff
s_mov_b32 s10, s{sKV}
s_mov_b32 s11, 0x20000
s_mov_b32 s12, s20
s_and_b32 s13, s21, 0xffff
s_mov_b32 s14, s{sKV}
s_mov_b32 s15, 0x20000
v_lshlrev_b32 v{v4g}, 2, v{vT0}
v_mov_b32 v{vNegInf}, 0xff800000
v_mov_b32 v{vM}, 0x{NEGBIG:08x}
v_mov_b32 v{vL}, 0
""")
    for i in range(4):
        A(f"""
v_add_u32 v{vT2}, {4*i}, v{vT0}
v_xor_b32 v{vT3}, v{vT2}, v{vT1}
v_lshlrev_b32 v{vT3}, 4, v{vT3}
v_lshl_add_u32 v{vKoff[i]}, v{vT2}, 11, v{vT3}
""")
        if i: A(f"v_subrev_u32 v{vKoff[i]}, {1024*i}, v{vKoff[i]}")
    A(f"""
v_lshlrev_b32 v{vT2}, 13, v{vT0}
v_lshl_add_u32 v{vVoff[0]}, v{vT1}, 4, v{vT2}
v_add_u32 v{vVoff[1]}, 0x1000, v{vVoff[0]}
v_xor_b32 v{vT2}, v{vT0}, v{vT1}
v_lshlrev_b32 v{vT2}, 4, v{vT2}
v_lshl_add_u32 v{vT2}, v{vT1}, 8, v{vT2}
v_add_u32 v{vKrd[0]}, s{sLdsB}, v{vT2}
v_xor_b32 v{vKrd[1]}, 64, v{vKrd[0]}
v_xor_b32 v{vKrd[2]}, 0x80, v{vKrd[0]}
v_xor_b32 v{vKrd[3]}, 0xc0, v{vKrd[0]}
""")
    for r in range(32):
        A(f"v_mov_b32 v{vO+r}, 0")
    vJ = [56, 57]
    vCa = 58
    vCw = 59
    A(f"""
v_lshlrev_b32 v{vJ[0]}, 5, v0
v_add_u32 v{vJ[1]}, 16, v{vJ[0]}
v_lshrrev_b32 v{vT2}, 1, v{vLane}
v_lshlrev_b32 v{vT2}, 6, v{vT2}
v_and_b32 v{vT3}, 1, v{vLane}
v_lshl_add_u32 v{vT2}, v{vT3}, 2, v{vT2}
s_lshl_b32 s{sTmp}, s{sWave}, 3
s_add_u32 s{sTmp}, s{sTmp}, {LDS_CNT}
v_add_u32 v{vCa}, s{sTmp}, v{vT2}
s_waitcnt lgkmcnt(0)
s_mov_b32 s{sZq}, 0
""")
    for b in range(4):
        A(f"""
s_cmp_lt_i32 s{sCtx+b}, 1
s_cselect_b32 s{sCtx+b}, 0x4000, s{sCtx+b}
s_cselect_b32 s{sTmp}, {0xff << (8*b)}, 0
s_or_b32 s{sZq}, s{sZq}, s{sTmp}
s_min_i32 s{sCtx+b}, s{sCtx+b}, 0x4000
""")
    def VAL(b, p): r = sVal + (b*2+p)*2; return f"s[{r}:{r+1}]"
    def LEAD(b, p): r = sLead + (b*2+p)*2; return f"s[{r}:{r+1}]"
    for p in range(2):
        for b in range(4):
            A(f"v_cmp_gt_i32 {VAL(b,p)}, s{sCtx+b}, v{vJ[p]}")
    A("s_waitcnt vmcnt(4)")
    if opt.get("stamps")==1: A("s_memrealtime s[88:89]")
    pairs = [(0,1),(0,2),(1,2),(0,3),(1,3),(2,3)]
    def EQ(k): r = sEq + 2*k; return f"s[{r}:{r+1}]"
    for p in range(2):
        for k, (a, b) in enumerate(pairs):
            A(f"v_cmp_eq_u32 {EQ(k)}, v{E[a]+p}, v{E[b]+p}")
        for k, (a, b) in enumerate(pairs):
            A(f"s_and_b64 {EQ(k)}, {EQ(k)}, {VAL(a,p)}")
        A(f"""
s_mov_b64 {LEAD(0,p)}, {VAL(0,p)}
s_andn2_b64 {LEAD(1,p)}, {VAL(1,p)}, {EQ(0)}
s_or_b64 {EQ(1)}, {EQ(1)}, {EQ(2)}
s_andn2_b64 {LEAD(2,p)}, {VAL(2,p)}, {EQ(1)}
s_or_b64 {EQ(3)}, {EQ(3)}, {EQ(4)}
s_or_b64 {EQ(3)}, {EQ(3)}, {EQ(5)}
s_andn2_b64 {LEAD(3,p)}, {VAL(3,p)}, {EQ(3)}
""")
    sCn = 56
    for b in range(4):
        for p in range(2):
            A(f"s_bcnt1_i32_b64 s{sCn+b*2+p}, {LEAD(b,p)}")
    for k in range(8):
        A(f"v_writelane_b32 v{vCw}, s{sCn+k}, {k}")
    A(f"""
s_mov_b64 exec, 0xff
ds_write_b32 v{vCa}, v{vCw}
s_mov_b64 exec, -1
v_lshlrev_b32 v{vT2}, 2, v{vLane}
v_add_u32 v{vT2}, {LDS_CNT}, v{vT2}
s_waitcnt lgkmcnt(0)
s_barrier
{'s_memrealtime s[82:83]' if opt.get('stamps')==1 else ''}
ds_read_b32 v{vT3}, v{vT2}
s_lshl_b32 s{sTmp}, s{sWave}, 1
s_waitcnt lgkmcnt(0)
v_mov_b32 v{vT4}, v{vT3}
s_nop 1
v_add_u32_dpp v{vT4}, v{vT4}, v{vT4} row_shr:1 row_mask:0xf bank_mask:0xf bound_ctrl:0
s_nop 1
v_add_u32_dpp v{vT4}, v{vT4}, v{vT4} row_shr:2 row_mask:0xf bank_mask:0xf bound_ctrl:0
s_nop 1
v_add_u32_dpp v{vT4}, v{vT4}, v{vT4} row_shr:4 row_mask:0xf bank_mask:0xf bound_ctrl:0
s_nop 1
v_add_u32_dpp v{vT4}, v{vT4}, v{vT4} row_shr:8 row_mask:0xf bank_mask:0xf bound_ctrl:0
s_nop 1
v_add_u32_dpp v{vT4}, v{vT4}, v{vT4} row_bcast:15 row_mask:0xa bank_mask:0xf
s_nop 1
v_add_u32_dpp v{vT4}, v{vT4}, v{vT4} row_bcast:31 row_mask:0xc bank_mask:0xf
s_nop 0
v_readlane_b32 s{sTmp2}, v{vT4}, 63
v_sub_u32 v{vT4}, v{vT4}, v{vT3}
s_mul_i32 s{sLo}, s{sSlice}, s{sTmp2}
s_add_u32 s{sNum}, s{sLo}, s{sTmp2}
s_lshr_b32 s{sLo}, s{sLo}, 6
s_lshr_b32 s{sNum}, s{sNum}, 6
s_sub_u32 s{sNum}, s{sNum}, s{sLo}
""")
    sSt = 64
    for b in range(4):
        for p in range(2):
            A(f"s_add_u32 s{sI}, s{sTmp}, {b*16+p}\nv_readlane_b32 s{sSt+b*2+p}, v{vT4}, s{sI}")
    vC = [60, 61, 62, 63]
    for b in range(4):
        for p in range(2):
            k = b*2+p
            lab = f"L_skip_{k}"
            A(f"""
s_sub_i32 s{sSt+k}, s{sSt+k}, s{sLo}
s_cmp_ge_i32 s{sSt+k}, s{sNum}
s_cbranch_scc1 {lab}
s_add_i32 s{sI}, s{sSt+k}, s{sCn+k}
s_cmp_le_i32 s{sI}, 0
s_cbranch_scc1 {lab}
v_mov_b32 v{vT2}, s{sSt+k}
v_mbcnt_lo_u32_b32 v{vT2}, s{sLead+2*k}, v{vT2}
v_mbcnt_hi_u32_b32 v{vT2}, s{sLead+2*k+1}, v{vT2}
""")
            for bb in range(b, 4):
                A(f"v_sub_u32 v{vC[bb]}, s{sCtx+bb}, v{vJ[p]}\nv_med3_i32 v{vC[bb]}, v{vC[bb]}, 0, 16")
                if bb: A(f"v_lshlrev_b32 v{vC[bb]}, {8*bb}, v{vC[bb]}")
            for bb in range(b+1, 4):
                A(f"v_cmp_eq_u32 vcc, v{E[b]+p}, v{E[bb]+p}\ns_nop 1\nv_cndmask_b32 v{vC[bb]}, 0, v{vC[bb]}, vcc\nv_or_b32 v{vC[b]}, v{vC[b]}, v{vC[bb]}")
            A(f"""
v_cmp_gt_u32 vcc, s{sNum}, v{vT2}
v_lshlrev_b32 v{vT2}, 3, v{vT2}
v_mov_b32 v{vT4+0}, v{E[b]+p}
v_mov_b32 v{vT4+1}, v{vC[b]}
s_and_b64 exec, vcc, {LEAD(b,p)}
ds_write_b64 v{vT2}, v[{vT4}:{vT4+1}] offset:{LDS_LIST}
s_mov_b64 exec, -1
{lab}:
""")
    A(f"""
v_lshlrev_b32 v{vT2}, 5, v{vLane}
s_lshl_b32 s{sTmp}, s{sSub}, 3
v_add_u32 v{vT2}, s{sTmp}, v{vT2}
v_and_b32 v{vT2}, 0x1ff, v{vT2}
s_sub_u32 s{sN}, s{sNum}, s{sSub}
s_add_u32 s{sN}, s{sN}, 3
s_lshr_b32 s{sN}, s{sN}, 2
s_lshl_b32 s{sTmp}, s{sHead}, 8
s_waitcnt lgkmcnt(0)
s_barrier
{'s_memrealtime s[84:85]' if opt.get('stamps')==1 else ''}
ds_read_b64 v[{vT4}:{vT4+1}], v{vT2} offset:{LDS_LIST}
v_cmp_gt_u32 vcc, s{sN}, v{vLane}
v_bfe_u32 v{vT3}, s{sZq}, v{vShift}, 1
v_add_u32 v{vT3}, -1, v{vT3}
s_waitcnt lgkmcnt(0)
v_min_u32 v{vT4}, 2559, v{vT4}
v_lshlrev_b32 v{vT4}, 15, v{vT4}
v_add_u32 v{vT4}, s{sTmp}, v{vT4}
v_cndmask_b32 v{vD0}, 0, v{vT4}, vcc
v_cndmask_b32 v{vD1}, 0, v{vT4+1}, vcc
""")
    def issueK(slot):
        for i in range(4):
            A(f"buffer_load_dwordx4 v{vKoff[i]}, s[8:11], s{sSoff} offen offset:{1024*i} {pol} lds")
    def issueV(slot):
        for i in range(4):
            r = vV[slot] + 4*i
            A(f"buffer_load_dwordx4 v[{r}:{r+3}], v{vVoff[i>>1]}, s[12:15], s{sSoff} offen offset:{2048*(i&1)} {pol}")
    for k in range(2):
        A(f"""
s_nop 0
v_readlane_b32 s{sSoff}, v{vD0}, {k}
s_cmp_gt_u32 s{sN}, {k}
s_cselect_b32 s10, s{sKV}, 0
s_cselect_b32 s14, s{sKV}, 0
s_add_u32 m0, s{sLdsB}, {4096*k}
s_nop 1
""")
        issueK(k); issueV(k)
    if opt.get("stamps")==1: A("s_memrealtime s[90:91]")
    A("s_waitcnt vmcnt(16)")
    for r in range(16):
        A(f"v_and_b32 v{vQ+r}, v{vT3}, v{vQ+r}")
    A(f"""
s_mov_b32 s{sI}, 0
s_cmp_eq_u32 s{sN}, 0
s_cbranch_scc1 L_done
L_loop:
""")
    sMk = [56, 58, 60, 62]
    def step(slot):
        A(f"""
s_add_u32 s{sK}, s{sI}, 2
v_readlane_b32 s{sSoff}, v{vD0}, s{sK}
v_readlane_b32 s{sPack}, v{vD1}, s{sI}
s_cmp_lt_u32 s{sK}, s{sN}
s_cselect_b32 s10, s{sKV}, 0
s_cselect_b32 s14, s{sKV}, 0
s_add_u32 m0, s{sLdsB}, {4096*slot}
s_waitcnt vmcnt(12)
""")
        for s in range(4):
            A(f"ds_read_b128 v[{vKf+4*s}:{vKf+4*s+3}], v{vKrd[s]} offset:{4096*slot}")
        A(f"""
v_bfe_u32 v{vT0}, s{sPack}, v{vShift}, 8
v_sub_u32 v{vT0}, v{vT0}, v{v4g}
""")
        for r in range(4):
            A(f"v_cmp_lt_i32 s[{sMk[r]}:{sMk[r]+1}], {r}, v{vT0}")
        for s in range(4):
            c = "0" if s == 0 else f"v[{vS}:{vS+3}]"
            A(f"s_waitcnt lgkmcnt({3-s})\nv_mfma_f32_16x16x32_bf16 v[{vS}:{vS+3}], v[{vKf+4*s}:{vKf+4*s+3}], v[{vQ+4*s}:{vQ+4*s+3}], {c}")
        issueK(slot)
        A("s_nop 3")
        for r in range(4):
            A(f"v_cndmask_b32 v{vS+r}, v{vNegInf}, v{vS+r}, s[{sMk[r]}:{sMk[r]+1}]")
        A(f"""
v_max3_f32 v{vT0}, v{vS}, v{vS+1}, v{vS+2}
v_max3_f32 v{vT0}, v{vT0}, v{vS+3}, v{vM}
v_mov_b32 v{vT1}, v{vT0}
s_nop 1
v_permlane32_swap_b32 v{vT0}, v{vT1}
v_max_f32 v{vT0}, v{vT0}, v{vT1}
v_mov_b32 v{vT1}, v{vT0}
s_nop 1
v_permlane16_swap_b32 v{vT0}, v{vT1}
v_max_f32 v{vT0}, v{vT0}, v{vT1}
v_sub_f32 v{vT1}, v{vM}, v{vT0}
v_mul_f32 v{vT2}, s{sC}, v{vT0}
v_mul_f32 v{vT1}, s{sC}, v{vT1}
v_mov_b32 v{vM}, v{vT0}
v_exp_f32 v{vAl}, v{vT1}
""")
        for r in range(4):
            A(f"v_fma_f32 v{vS+r}, v{vS+r}, s{sC}, -v{vT2}")
        for r in range(4):
            A(f"v_exp_f32 v{vS+r}, v{vS+r}")
        A(f"""
v_cmp_neq_f32 vcc, 1.0, v{vAl}
v_add_f32 v{vT0}, v{vS}, v{vS+1}
v_add_f32 v{vT1}, v{vS+2}, v{vS+3}
v_cvt_pk_bf16_f32 v{vP}, v{vS}, v{vS+1}
v_cvt_pk_bf16_f32 v{vP+1}, v{vS+2}, v{vS+3}
v_add_f32 v{vT0}, v{vT0}, v{vT1}
v_fma_f32 v{vL}, v{vL}, v{vAl}, v{vT0}
s_cbranch_vccz L_nors_{slot}
""")
        for r in range(32):
            A(f"v_mul_f32 v{vO+r}, v{vAl}, v{vO+r}")
        A(f"L_nors_{slot}:\ns_waitcnt vmcnt(12)")
        R = vV[slot]
        for w in range(4):
            for hl in range(2):
                e = 2*w + hl
                sel = sSelHi if hl else sSelLo
                A(f"v_perm_b32 v{vKf+2*e}, v{R+4+w}, v{R+w}, s{sel}")
                A(f"v_perm_b32 v{vKf+2*e+1}, v{R+12+w}, v{R+8+w}, s{sel}")
        issueV(slot)
        for e in range(8):
            A(f"v_mfma_f32_16x16x16_bf16 v[{vO+4*e}:{vO+4*e+3}], v[{vKf+2*e}:{vKf+2*e+1}], v[{vP}:{vP+1}], v[{vO+4*e}:{vO+4*e+3}]")
        A(f"s_add_u32 s{sI}, s{sI}, 1")
    step(0)
    A(f"s_cmp_ge_u32 s{sI}, s{sN}\ns_cbranch_scc1 L_done")
    step(1)
    A(f"s_cmp_lt_u32 s{sI}, s{sN}\ns_cbranch_scc1 L_loop")
    A("L_done:")
    if opt.get("stamps"): A("s_memrealtime s[78:79]")
    A(f"""
v_mov_b32 v{vT1}, v{vL}
v_lshrrev_b32 v{vT2}, 4, v{vLane}
v_and_b32 v{vT3}, 15, v{vLane}
v_permlane32_swap_b32 v{vL}, v{vT1}
v_add_f32 v{vL}, v{vL}, v{vT1}
v_mov_b32 v{vT1}, v{vL}
; write addr = wavebase + q*512 + g*128 + (q&7)*16
v_lshlrev_b32 v{vT4}, 9, v{vT3}
v_lshl_add_u32 v{vT4}, v{vT2}, 7, v{vT4}
v_permlane16_swap_b32 v{vL}, v{vT1}
v_add_f32 v{vL}, v{vL}, v{vT1}
v_and_b32 v{vT5}, 7, v{vT3}
v_lshl_add_u32 v{vT4}, v{vT5}, 4, v{vT4}
v_add_u32 v{vT4}, s{sLdsB}, v{vT4}
; stats addr = STATS + hh*512 + q*32 + sub*8
s_and_b32 s{sTmp}, s{sWave}, 1
s_lshl_b32 s{sK}, s{sTmp}, 9
s_lshl_b32 s{sI}, s{sSub}, 3
s_add_u32 s{sI}, s{sI}, s{sK}
v_lshlrev_b32 v{vT5}, 5, v{vT3}
v_add_u32 v{vT5}, s{sI}, v{vT5}
s_waitcnt vmcnt(0)
{'s_memrealtime s[88:89]' if opt.get('stamps')==2 else ''}
ds_write_b64 v{vT5}, v[{vM}:{vM+1}] offset:{LDS_STATS}
""".replace(f"v[{vM}:{vM+1}]", f"v[{vKf}:{vKf+1}]").replace("ds_write_b64", f"v_mov_b32 v{vKf}, v{vM}\nv_mov_b32 v{vKf+1}, v{vL}\nds_write_b64"))
    for e in range(8):
        if e == 0:
            A(f"ds_write_b128 v{vT4}, v[{vO}:{vO+3}]")
        else:
            t = vT0 if e & 1 else vT1
            A(f"v_xor_b32 v{t}, {e<<4}, v{vT4}\nds_write_b128 v{t}, v[{vO+4*e}:{vO+4*e+3}]")
    A(f"""
s_lshl_b32 s{sI}, s{sSub}, 2
v_add_u32 v{vT2}, s{sI}, v{vT2}
v_and_b32 v{vT0}, 7, v{vT2}
v_xor_b32 v{vT0}, v{vT0}, v{vT3}
v_lshlrev_b32 v{vT0}, 4, v{vT0}
v_lshl_add_u32 v{vT0}, v{vT2}, 9, v{vT0}
s_lshl_b32 s{sI}, s{sTmp}, 13
v_add_u32 v{vT0}, s{sI}, v{vT0}
v_lshlrev_b32 v{vT1}, 5, v{vT2}
v_add_u32 v{vT1}, s{sK}, v{vT1}
s_lshl_b32 s{sI}, s{sHp}, 5
s_lshl_b32 s{sK}, s{sTmp}, 4
s_add_u32 s{sI}, s{sI}, s{sK}
v_add_u32 v{vT2}, s{sI}, v{vT2}
v_lshlrev_b32 v{vT4}, 15, v{vT2}
v_lshl_add_u32 v{vT4}, v{vT3}, 4, v{vT4}
s_lshl_b32 s{sI}, s{sSlice}, 9
v_add_u32 v{vT4}, s{sI}, v{vT4}
v_lshlrev_b32 v{vT5}, 9, v{vT2}
s_lshl_b32 s{sI}, s{sSlice}, 3
s_add_u32 s{sI}, s{sI}, 0x{WS_ML:x}
v_add_u32 v{vT5}, s{sI}, v{vT5}
s_waitcnt lgkmcnt(0)
{'s_memrealtime s[90:91]' if opt.get('stamps')==2 else ''}
s_barrier
{'s_memrealtime s[82:83]' if opt.get('stamps')==2 else ''}
{'s_waitcnt lgkmcnt(0)' if opt.get('stamps')==2 else ''}
ds_read_b128 v[{vQ}:{vQ+3}], v{vT1} offset:{LDS_STATS}
ds_read_b128 v[{vQ+4}:{vQ+7}], v{vT1} offset:{LDS_STATS+16}
""")
    X = 64
    for wv in range(4):
        A(f"ds_read_b128 v[{X+8*wv}:{X+8*wv+3}], v{vT0} offset:{LDS_RING+wv*16384}")
        A(f"ds_read_b128 v[{X+8*wv+4}:{X+8*wv+7}], v{vT0} offset:{LDS_RING+wv*16384+256}")
    m = [vQ, vQ+2, vQ+4, vQ+6]; l = [vQ+1, vQ+3, vQ+5, vQ+7]
    vW = vQ+8
    A(f"""
s_waitcnt lgkmcnt(8)
v_max3_f32 v{vKf}, v{m[0]}, v{m[1]}, v{m[2]}
v_max_f32 v{vKf}, v{vKf}, v{m[3]}
""")
    for i in range(4):
        A(f"v_sub_f32 v{vW+i}, v{m[i]}, v{vKf}")
    for i in range(4):
        A(f"v_mul_f32 v{vW+i}, s{sC}, v{vW+i}")
    for i in range(4):
        A(f"v_exp_f32 v{vW+i}, v{vW+i}")
    A(f"""
v_cmp_eq_u32 s[56:57], 0, v{vT3}
v_mul_f32 v{vKf+1}, v{vW}, v{l[0]}
v_fmac_f32 v{vKf+1}, v{vW+1}, v{l[1]}
v_fmac_f32 v{vKf+1}, v{vW+2}, v{l[2]}
v_fmac_f32 v{vKf+1}, v{vW+3}, v{l[3]}
s_mov_b64 exec, s[56:57]
global_store_dwordx2 v{vT5}, v[{vKf}:{vKf+1}], s[30:31]
s_mov_b64 exec, -1
v_cmp_lt_f32 vcc, 0, v{vKf+1}
s_waitcnt lgkmcnt(6)
""")
    for k in range(8):
        A(f"v_mul_f32 v{vO+k}, v{vW}, v{X+k}")
    for wv in range(1, 4):
        A(f"s_waitcnt lgkmcnt({6-2*wv})")
        for k in range(8):
            A(f"v_fmac_f32 v{vO+k}, v{vW+wv}, v{X+8*wv+k}")
    A(f"""
{'s_memrealtime s[84:85]' if opt.get('stamps')==2 else ''}
s_and_saveexec_b64 s[58:59], vcc
s_cbranch_execz L_nost
global_store_dwordx4 v{vT4}, v[{vO}:{vO+3}], s[30:31]
global_store_dwordx4 v{vT4}, v[{vO+4}:{vO+7}], s[30:31] offset:256
L_nost:
s_mov_b64 exec, -1
""")
    if opt.get("stamps"):
        A(f"""
s_memrealtime s[80:81]
s_waitcnt lgkmcnt(0)
s_lshl_b32 s33, s2, 6
s_add_u32 s34, s30, 0x12c00000
s_addc_u32 s35, s31, 0
s_add_u32 s34, s34, s33
s_addc_u32 s35, s35, 0
v_mov_b32 v13, 0
s_mov_b64 exec, 1
""")
        for slot, r in [(1,80),(2,88),(3,90),(4,78),(5,82),(6,84)]:
            A(f"v_mov_b32 v14, s{r}\nv_mov_b32 v15, s{r+1}\nglobal_atomic_umax_x2 v13, v[14:15], s[34:35] offset:{8*slot}")
        A(f"""
s_cmp_lg_u32 s3, 0
s_cbranch_scc1 L_end
v_mov_b32 v14, s86
v_mov_b32 v15, s87
global_store_dwordx2 v13, v[14:15], s[34:35]
s_getreg_b32 s56, hwreg(HW_REG_XCC_ID)
s_add_u32 s56, s56, 1
v_mov_b32 v14, s56
v_mov_b32 v15, 0
global_store_dwordx2 v13, v[14:15], s[34:35] offset:56
""")
    A("L_end:\ns_endpgm")
    return A.text(), 128, 102

def combine_kernel(opt):
    A = Asm()
    kn = opt["comb_name"]
    A(f".globl {kn}\n.p2align 8\n.type {kn},@function\n{kn}:")
    A(f"""
s_cmp_ge_u32 s2, 128
s_cbranch_scc1 L_cend
s_load_dwordx2 s[4:5], s[0:1], 40
s_load_dwordx2 s[6:7], s[0:1], 56
s_lshr_b32 s8, s2, 5
s_and_b32 s9, s2, 31
s_lshr_b32 s10, s9, 2
s_lshl_b32 s10, s10, 4
s_lshl_b32 s8, s8, 2
s_add_u32 s10, s10, s8
s_and_b32 s9, s9, 3
s_add_u32 s10, s10, s9
s_mov_b32 s11, 0x{CSCALE:08x}
v_and_b32 v1, 63, v0
v_lshrrev_b32 v2, 5, v0
v_and_b32 v3, 31, v0
s_lshl_b32 s12, s10, 15
v_lshlrev_b32 v4, 12, v2
v_lshl_add_u32 v4, v3, 4, v4
v_add_u32 v4, s12, v4
s_lshl_b32 s13, s10, 9
s_add_u32 s13, s13, 0x{WS_ML:x}
v_lshlrev_b32 v5, 6, v2
v_add_u32 v5, s13, v5
v_lshlrev_b32 v6, 3, v1
v_add_u32 v6, s13, v6
s_waitcnt lgkmcnt(0)
global_load_dwordx2 v[8:9], v6, s[6:7]
""")
    for k in range(4):
        A(f"global_load_dwordx4 v[{12+4*k}:{15+4*k}], v5, s[6:7] offset:{16*k}")
    for i in range(8):
        A(f"global_load_dwordx4 v[{32+4*i}:{35+4*i}], v4, s[6:7] offset:{512*i}")
    A("s_waitcnt vmcnt(12)\nv_mov_b32 v10, v8")
    for ctl in ["row_shr:1 row_mask:0xf", "row_shr:2 row_mask:0xf", "row_shr:4 row_mask:0xf", "row_shr:8 row_mask:0xf", "row_bcast:15 row_mask:0xa", "row_bcast:31 row_mask:0xc"]:
        A(f"s_nop 1\nv_max_f32_dpp v10, v10, v10 {ctl} bank_mask:0xf")
    A("""
s_nop 0
v_readlane_b32 s14, v10, 63
s_nop 1
v_subrev_f32 v10, s14, v8
v_mul_f32 v10, s11, v10
v_exp_f32 v10, v10
s_nop 0
v_mul_f32 v10, v10, v9
""")
    for ctl in ["row_shr:1 row_mask:0xf", "row_shr:2 row_mask:0xf", "row_shr:4 row_mask:0xf", "row_shr:8 row_mask:0xf"]:
        A(f"s_nop 1\nv_add_f32_dpp v10, v10, v10 {ctl} bank_mask:0xf bound_ctrl:0")
    for ctl in ["row_bcast:15 row_mask:0xa", "row_bcast:31 row_mask:0xc"]:
        A(f"s_nop 1\nv_add_f32_dpp v10, v10, v10 {ctl} bank_mask:0xf")
    A("""
s_nop 0
v_readlane_b32 s15, v10, 63
s_nop 1
v_rcp_f32 v11, s15
v_mov_b32 v28, 0
v_mov_b32 v29, 0
v_mov_b32 v30, 0
v_mov_b32 v31, 0
s_waitcnt vmcnt(8)
""")
    for i in range(8):
        A(f"v_subrev_f32 v{12+2*i}, s14, v{12+2*i}")
    for i in range(8):
        A(f"v_mul_f32 v{12+2*i}, s11, v{12+2*i}")
    for i in range(8):
        A(f"v_exp_f32 v{12+2*i}, v{12+2*i}")
    A("s_nop 0")
    for i in range(8):
        A(f"v_mul_f32 v{12+2*i}, v{12+2*i}, v11")
    for i in range(8):
        A(f"v_cmp_lt_f32 vcc, 0, v{13+2*i}\ns_waitcnt vmcnt({7-i})\ns_mov_b64 exec, vcc")
        for r in range(4):
            A(f"v_fmac_f32 v{28+r}, v{12+2*i}, v{32+4*i+r}")
        A("s_mov_b64 exec, -1")
    for r in range(4):
        A(f"v_mov_b32 v{32+r}, v{28+r}")
    A("s_nop 1")
    for r in range(4):
        A(f"v_permlane32_swap_b32 v{28+r}, v{32+r}")
    for r in range(4):
        A(f"v_add_f32 v{28+r}, v{28+r}, v{32+r}")
    A("""
v_lshrrev_b32 v7, 6, v0
v_lshlrev_b32 v7, 9, v7
v_lshl_add_u32 v7, v3, 4, v7
ds_write_b128 v7, v[28:31]
v_lshlrev_b32 v7, 4, v3
s_waitcnt lgkmcnt(0)
s_barrier
v_cmp_gt_u32 vcc, 32, v0
s_and_saveexec_b64 s[16:17], vcc
s_cbranch_execz L_cend
ds_read_b128 v[32:35], v7
ds_read_b128 v[36:39], v7 offset:512
ds_read_b128 v[40:43], v7 offset:1024
ds_read_b128 v[44:47], v7 offset:1536
v_lshrrev_b32 v8, 3, v3
v_lshlrev_b32 v8, 6, v8
v_and_b32 v9, 7, v3
v_lshl_add_u32 v8, v9, 1, v8
s_lshl_b32 s12, s2, 8
v_add_u32 v8, s12, v8
s_waitcnt lgkmcnt(0)
""")
    for r in range(4):
        A(f"v_add_f32 v{32+r}, v{32+r}, v{36+r}\nv_add_f32 v{40+r}, v{40+r}, v{44+r}\nv_add_f32 v{32+r}, v{32+r}, v{40+r}")
    A("""
v_cvt_pk_bf16_f32 v36, v32, v33
v_cvt_pk_bf16_f32 v37, v34, v35
global_store_short v8, v36, s[4:5]
global_store_short_d16_hi v8, v36, s[4:5] offset:16
global_store_short v8, v37, s[4:5] offset:32
global_store_short_d16_hi v8, v37, s[4:5] offset:48
L_cend:
s_endpgm
""")
    return A.text(), 64, 24

def kd(name, nv, ns):
    return f""".p2align 6
.amdhsa_kernel {name}
  .amdhsa_next_free_vgpr {nv}
  .amdhsa_next_free_sgpr {ns}
  .amdhsa_accum_offset {(nv+3)//4*4}
  .amdhsa_group_segment_fixed_size 0
  .amdhsa_kernarg_size 64
  .amdhsa_user_sgpr_count 2
  .amdhsa_user_sgpr_kernarg_segment_ptr 1
  .amdhsa_system_sgpr_workgroup_id_x 1
.end_amdhsa_kernel
"""

HEADER = open("cdna_kernels/%s.s.ref" % NAME).read().split("; Override")[0]

def build(opt):
    opt.setdefault("main_name", NAME + "_kernel")
    opt.setdefault("comb_name", "radix_combine_kernel")
    m, mv, ms = main_kernel(opt)
    c, cv, cs = combine_kernel(opt)
    launches = [(opt["main_name"], 256, 512, LDS_TOTAL), (opt["comb_name"], 128, 256, 2048)]
    s = HEADER
    for n, g, b, l in launches:
        s += f"; @launch kernel={n} grid=({g},1,1) block=({b},1,1) lds={l}\n"
    s += '.amdgcn_target "amdgcn-amd-amdhsa--gfx950"\n.text\n' + m + c
    s += '.section .rodata,"a"\n' + kd(opt["main_name"], mv, ms) + kd(opt["comb_name"], cv, cs)
    return s, launches

if __name__ == "__main__":
    opt = {}
    out = sys.argv[1]
    for a in sys.argv[2:]:
        k, v = a.split("=")
        opt[k] = int(v) if v.lstrip("-").isdigit() else v
    s, launches = build(opt)
    open(out, "w").write(s)
    open(out + ".list", "w").write(" ".join(f"{n}:{g}:{b}:{l}" for n, g, b, l in launches) + "\n")
```
